```python
import torch

def _softmax(x, axis=-1):
    return torch.softmax(x, dim=axis)
def _gelu(x):
    return torch.nn.functional.gelu(x, approximate="tanh")
def _silu(x):
    return torch.nn.functional.silu(x)
def _sigmoid(x):
    return torch.sigmoid(x)
def _layernorm(x, axis=-1, eps=1e-5):
    m = x.mean(dim=axis, keepdim=True)
    v = x.var(dim=axis, keepdim=True, unbiased=False)
    return (x - m) / torch.sqrt(v + eps)
def _scatter_add(tgt, idx, src, axis=0):
    return tgt.clone().index_add_(axis, idx, src)
def _segment_sum(src, seg, n):
    out = torch.zeros((n,) + src.shape[1:], dtype=src.dtype)
    return out.index_add_(0, seg, src)
def _pad(x, pw):
    flat = tuple(v for pair in reversed(pw) for v in pair)
    return torch.nn.functional.pad(x, flat)

kernel_name = 'parallel_sum__ssm_conv_s4__mixer_channel_mlp__prompt'

def setup_inputs():

    _w = (lambda a: (lambda t: t.to(torch.bfloat16) if t.is_floating_point() else t)(torch.as_tensor(a)))
    def _A_setup():
        B, L, D, N = 1, 2048, 640, 192
        A_re = -(lambda _x: torch.exp(torch.as_tensor(_x)))((lambda *s: torch.randn(*s, dtype=torch.bfloat16) * 3.2)(D, N))
        A_im = torch.pi * (lambda *s: torch.randn(*s, dtype=torch.bfloat16) * 0.05)(D, N)
        B_re = (lambda *s: torch.randn(*s, dtype=torch.bfloat16) * 0.1)(D, N)
        B_im = (lambda *s: torch.randn(*s, dtype=torch.bfloat16) * 0.1)(D, N)
        C_re = (lambda *s: torch.randn(*s, dtype=torch.bfloat16) * 0.1)(D, N)
        C_im = (lambda *s: torch.randn(*s, dtype=torch.bfloat16) * 0.1)(D, N)
        log_dt = (lambda *s: torch.randn(*s, dtype=torch.bfloat16) * 0.05)(D) * 0.5 - 4.0
        Dskip = (lambda *s: torch.randn(*s, dtype=torch.bfloat16) * 0.05)(D)
        return {
            "u": _w((lambda *s: torch.randn(*s, dtype=torch.bfloat16) * 0.05)(B, L, D)),
            "A_re": _w(A_re),
            "A_im": _w(A_im),
            "B_re": _w(B_re),
            "B_im": _w(B_im),
            "C_re": _w(C_re),
            "C_im": _w(C_im),
            "log_dt": _w(log_dt),
            "Dskip": _w(Dskip),
        }
    _A_in = _A_setup()

    def _B_setup():
        B, S, D, F = 1, 2048, 640, 1536
        return {
            "x": _w((lambda *s: torch.randn(*s, dtype=torch.bfloat16) * 0.05)(B, S, D)),
            "w1": _w((lambda *s: torch.randn(*s, dtype=torch.bfloat16) * 1.6)(D, F) * (D ** -0.5)),
            "b1": _w((lambda *s: torch.randn(*s, dtype=torch.bfloat16) * 0.8)(F)),
            "w2": _w((lambda *s: torch.randn(*s, dtype=torch.bfloat16) * 0.05)(F, D) * (F ** -0.5)),
            "b2": _w((lambda *s: torch.randn(*s, dtype=torch.bfloat16) * 0.05)(D)),
        }
    _B_in = _B_setup()

    return {
        "A_u": _A_in["u"],
        "A_A_re": _A_in["A_re"],
        "A_A_im": _A_in["A_im"],
        "A_B_re": _A_in["B_re"],
        "A_B_im": _A_in["B_im"],
        "A_C_re": _A_in["C_re"],
        "A_C_im": _A_in["C_im"],
        "A_log_dt": _A_in["log_dt"],
        "A_Dskip": _A_in["Dskip"],
        "B_x": _B_in["x"],
        "B_w1": _B_in["w1"],
        "B_b1": _B_in["b1"],
        "B_w2": _B_in["w2"],
        "B_b2": _B_in["b2"],
    }

def reference(A_u, A_A_re, A_A_im, A_B_re, A_B_im, A_C_re, A_C_im, A_log_dt, A_Dskip, B_x, B_w1, B_b1, B_w2, B_b2):
    def _A_ref(u, A_re, A_im, B_re, B_im, C_re, C_im, log_dt, Dskip):
        Bsz, L, D = u.shape
        dt = torch.exp(log_dt)[:, None]
        A = A_re + 1j * A_im
        Bc = B_re + 1j * B_im
        Cc = C_re + 1j * C_im
        logdA = dt * A
        dB = dt * Bc
        l = (lambda x, dt: x.to(dt))(torch.arange(L), A_re.dtype)
        P = torch.exp(logdA[:, :, None] * l[None, None, :])
        K = torch.einsum("dn,dnl,dn->dl", Cc, P, dB).real
        L2 = 2 * L
        Kp = _pad(K, ((0, 0), (0, L)))
        up = (lambda x, *d: x.permute(*d))(u, 0, 2, 1)
        up = _pad(up, ((0, 0), (0, 0), (0, L)))
        Kf = (lambda x, axes=(-2,-1): torch.fft.rfft2(x.float(), dim=axes))(Kp[:, None, :], axes=(-2, -1))
        Uf = (lambda x, axes=(-2,-1): torch.fft.rfft2(x.float(), dim=axes))(up[:, :, None, :], axes=(-2, -1))
        Yf = Uf * Kf[None, :, :, :]
        y = (lambda x, s, axes=(-2,-1): torch.fft.irfft2(x, s=s, dim=axes).to(torch.bfloat16))(Yf, (1, L2), axes=(-2, -1))[:, :, 0, :L]
        y = (lambda x, *d: x.permute(*d))(y, 0, 2, 1) + u * Dskip[None, None, :]
        return y

    def _B_ref(x, w1, b1, w2, b2):
        y = _layernorm(x, axis=-1)
        h = _gelu(torch.einsum("bsd,df->bsf", y, w1) + b1)
        return torch.einsum("bsf,fd->bsd", h, w2) + b2

    x = A_u
    xn = _layernorm(x, axis=-1)
    return x + _A_ref(xn, A_A_re, A_A_im, A_B_re, A_B_im, A_C_re, A_C_im, A_log_dt, A_Dskip) + _B_ref(xn, B_w1, B_b1, B_w2, B_b2)
```

```python
import re

REG_RE = re.compile(r'^(-|abs\()?\|?([vas])(?:\[(\d+):(\d+)\]|(\d+))\)?\|?$')
TRANS = ('v_exp_f32', 'v_log_f32', 'v_rcp_f32', 'v_rsq_f32', 'v_sqrt_f32', 'v_sin_f32', 'v_cos_f32')


def regs_of(tok):
    tok = tok.strip()
    if tok in ('vcc', 'exec', 'm0'):
        return [tok]
    if tok in ('vcc_lo', 'vcc_hi'):
        return ['vcc']
    if tok in ('exec_lo', 'exec_hi'):
        return ['exec']
    m = REG_RE.match(tok)
    if not m:
        return []
    k = m.group(2)
    if m.group(5) is not None:
        return [k + m.group(5)]
    return [k + str(i) for i in range(int(m.group(3)), int(m.group(4)) + 1)]


class I:
    def __init__(self, text, extra_uses=(), extra_defs=()):
        self.text = text.strip()
        self.vm_wait = None
        self.lgkm_wait = None
        self.nops = 0
        self.need_vm = []
        self.need_lgkm = []
        parts = self.text.split(None, 1)
        op = parts[0]
        self.op = op
        rest = parts[1] if len(parts) > 1 else ''
        rest = rest.split(';')[0]
        ops, depth, cur = [], 0, ''
        for ch in rest:
            if ch == '[' or ch == '(':
                depth += 1
            if ch == ']' or ch == ')':
                depth -= 1
            if ch == ',' and depth == 0:
                ops.append(cur.strip()); cur = ''
            else:
                cur += ch
        mods = ''
        if cur.strip():
            last = cur.strip().split(None, 1)
            ops.append(last[0])
            mods = last[1] if len(last) > 1 else ''
        self.ops, self.mods = ops, mods
        R = [regs_of(o) for o in ops]
        flat = lambda L: [r for x in L for r in x]
        base = re.sub(r'_(e32|e64|dpp|sdwa)$', '', op)
        self.base = base
        defs, uses = [], []
        self.kind = 'other'
        self.srcc = []
        self.srcab = []
        self.store_data = []
        if op.startswith('v_mfma'):
            self.kind = 'mfma'
            defs = R[0]; uses = flat(R[1:]); self.srcc = R[3]; self.srcab = R[1] + R[2]
            self.passes = 8 if '32x32x16' in op else 4
        elif op.startswith('v_'):
            self.kind = 'valu'
            if base.startswith('v_permlane') and 'swap' in base:
                defs = flat(R); uses = flat(R)
            elif base == 'v_nop':
                pass
            else:
                defs = R[0]; uses = flat(R[1:])
                if base.startswith(('v_fmac', 'v_dot2c', 'v_writelane')) or op.endswith('_dpp') or op.endswith('_sdwa'):
                    uses = uses + R[0]
                if base.startswith('v_cmpx'):
                    defs = defs + ['exec']
        elif op.startswith('ds_'):
            self.kind = 'ds'
            if op.startswith(('ds_read', 'ds_bpermute', 'ds_permute', 'ds_swizzle')):
                defs = R[0]; uses = flat(R[1:])
                if 'd16' in op:
                    uses = uses + R[0]
            else:
                uses = flat(R)
        elif op.startswith(('buffer_', 'global_')):
            self.kind = 'vm'
            ml = mods.split()
            if 'load' in op and ('lds' in ml or '_lds_' in op):
                uses = flat(R) + ['m0']
                self.is_dma = True
            elif 'load' in op:
                defs = R[0]; uses = flat(R[1:])
                if 'd16' in op:
                    uses = uses + R[0]
            else:
                uses = flat(R)
                d = R[0] if op.startswith('buffer_') else R[1]
                if len(d) >= 3:
                    self.store_data = d
        elif op.startswith(('s_load', 's_memtime', 's_memrealtime', 's_buffer_load')):
            self.kind = 'smem'
            defs = R[0]; uses = flat(R[1:])
        elif op.startswith('s_'):
            self.kind = 'salu'
            if op.startswith(('s_cmp', 's_bitcmp', 's_cbranch', 's_branch', 's_waitcnt', 's_barrier', 's_nop', 's_sleep',
                              's_setprio', 's_endpgm', 's_setpc')):
                uses = flat(R)
            else:
                defs = R[0]; uses = flat(R[1:])
                if op.startswith(('s_addk', 's_mulk', 's_cmov')):
                    uses = uses + R[0]
                if 'saveexec' in op:
                    defs = defs + ['exec']; uses = uses + ['exec']
        self.defs = set(defs) | set(extra_defs)
        self.uses = set(uses) | set(extra_uses)
        self.trans = base in TRANS
        self.dpp = op.endswith('_dpp')

    def states(self):
        if self.op == 's_nop':
            return int(self.ops[0], 0) + 1
        return 1


class Raw:
    def __init__(self, text, uses=(), drains=False):
        self.text = text
        self.uses = set(uses); self.defs = set()
        self.kind = 'raw'; self.op = 'raw'; self.base = 'raw'
        self.vm_wait = None; self.lgkm_wait = None; self.nops = 0
        self.need_vm = []; self.need_lgkm = []
        self.trans = False; self.dpp = False
        self.srcc = []; self.srcab = []; self.store_data = []

    def states(self):
        return 0


class Alt:
    cnt = 0

    def __init__(self, branch_to_b, a, b):
        Alt.cnt += 1
        n = Alt.cnt
        self.br = I(f'{branch_to_b} L_alt{n}_b')
        self.a = a
        self.b = b
        self.jmp = I(f's_branch L_alt{n}_e') if b else None
        self.lb = Raw(f'L_alt{n}_b:')
        self.le = Raw(f'L_alt{n}_e:')


def linearize(items, choice):
    out = []
    for it in items:
        if isinstance(it, Alt):
            out.append(it.br)
            if not choice[id(it)]:
                out += linearize(it.a, choice)
                if it.jmp:
                    out.append(it.jmp)
            else:
                out += linearize(it.b, choice)
        else:
            out.append(it)
    return out


def flatten(items):
    out = []
    for it in items:
        if isinstance(it, Alt):
            out.append(it.br)
            out += flatten(it.a)
            if it.jmp:
                out.append(it.jmp)
            out.append(it.lb)
            out += flatten(it.b)
            out.append(it.le)
        else:
            out.append(it)
    return out


def wait_pass(seq):
    vm_n = 0; vm_done = 0; lg_n = 0; lg_done = 0
    pend_vm = {}; pend_lg = {}
    seqno = {}
    smem_out = False
    pend_smem = set()
    for it in seq:
        need_vm = 0; need_lg = 0; force_lg0 = False
        for r in (it.uses | it.defs):
            if r in pend_vm: need_vm = max(need_vm, pend_vm[r])
            if r in pend_lg: need_lg = max(need_lg, pend_lg[r])
            if r in pend_smem: force_lg0 = True
        for t in it.need_vm:
            if t == 'all': need_vm = vm_n
            elif id(t) in seqno: need_vm = max(need_vm, seqno[id(t)])
        for t in it.need_lgkm:
            if t == 'all': need_lg = lg_n
            elif id(t) in seqno: need_lg = max(need_lg, seqno[id(t)])
        if need_vm > vm_done:
            n = min(vm_n - need_vm, 63)
            it.vm_wait = n if it.vm_wait is None else min(it.vm_wait, n)
        if need_lg > lg_done or force_lg0:
            n = 0 if (smem_out or force_lg0) else min(lg_n - need_lg, 15)
            it.lgkm_wait = n if it.lgkm_wait is None else min(it.lgkm_wait, n)
        if it.vm_wait is not None:
            vm_done = max(vm_done, vm_n - it.vm_wait)
        if it.lgkm_wait is not None:
            if it.lgkm_wait == 0:
                lg_done = lg_n; smem_out = False; pend_smem = set()
            elif not smem_out:
                lg_done = max(lg_done, lg_n - it.lgkm_wait)
        if it.op == 's_waitcnt':
            m = re.search(r'vmcnt\((\d+)\)', it.text)
            if m: vm_done = max(vm_done, vm_n - int(m.group(1)))
            m = re.search(r'lgkmcnt\((\d+)\)', it.text)
            if m:
                if int(m.group(1)) == 0:
                    lg_done = lg_n; smem_out = False; pend_smem = set()
                elif not smem_out:
                    lg_done = max(lg_done, lg_n - int(m.group(1)))
        if it.kind == 'vm':
            vm_n += 1; seqno[id(it)] = vm_n
            for r in it.defs: pend_vm[r] = vm_n
        elif it.kind == 'ds':
            lg_n += 1; seqno[id(it)] = lg_n
            for r in it.defs: pend_lg[r] = lg_n
        elif it.kind == 'smem':
            smem_out = True
            pend_smem |= it.defs


def need_states(p, c):
    n = 0
    isv = lambda s: {r for r in s if r[0] in 'va' and r not in ('vcc',)}
    iss = lambda s: {r for r in s if r[0] == 's' or r == 'vcc'}
    if p.kind == 'valu':
        pv = isv(p.defs); ps = iss(p.defs)
        if c.kind == 'mfma' and pv & c.uses: n = max(n, 2)
        if c.kind == 'valu':
            if c.dpp and pv & c.uses: n = max(n, 2)
            if c.base.startswith('v_permlane') and pv & c.uses: n = max(n, 2)
            if c.base in ('v_readfirstlane_b32', 'v_readlane_b32') and pv & c.uses: n = max(n, 1)
            if p.trans and (pv & c.uses): n = max(n, 1)
            if ps & c.uses:
                n = max(n, 4 if c.base in ('v_readlane_b32', 'v_writelane_b32') else 2)
            if (p.op.endswith('_sdwa') or ('op_sel' in p.mods and not p.base.startswith('v_pk_'))) and pv & (c.uses | c.defs): n = max(n, 1)
        if c.kind in ('ds', 'vm') and p.trans and (pv & c.uses): n = max(n, 1)
        if c.kind == 'vm' and ps & c.uses: n = max(n, 5)
        if c.kind in ('salu', 'smem', 'raw') and ps & c.uses: n = max(n, 1)
        if 'exec' in p.defs:
            n = max(n, 5 if c.kind in ('valu', 'mfma') else 0)
    if p.kind == 'mfma':
        big = p.passes == 8
        if c.kind == 'mfma':
            if p.defs & set(c.srcab): n = max(n, 12 if big else 8)
            if p.defs & set(c.srcc):
                if not (set(c.srcc) == p.defs and c.passes == p.passes): n = max(n, 10 if big else 6)
            elif p.defs & c.defs:
                n = max(n, 10 if big else 6)
        elif c.kind in ('valu', 'ds', 'vm', 'raw'):
            if p.defs & (c.uses | c.defs): n = max(n, 12 if big else 8)
            if set(p.srcc) & c.defs: n = max(n, 7 if big else 3)
    if p.kind == 'vm' and p.store_data:
        if set(p.store_data) & c.defs: n = max(n, 2)
    if p.kind == 'salu':
        if 'm0' in p.defs and 'm0' in c.uses and c.kind in ('vm', 'ds'): n = max(n, 1)
    return n


def hazard_pass(seq):
    changed = False
    for i, c in enumerate(seq):
        dist = c.nops + (1 if (c.vm_wait is not None or c.lgkm_wait is not None) else 0)
        j = i - 1
        add = 0
        while j >= 0 and dist < 12:
            p = seq[j]
            n = need_states(p, c)
            if n > dist + add:
                add = n - dist
            dist += p.states() + p.nops + (1 if (p.vm_wait is not None or p.lgkm_wait is not None) else 0)
            j -= 1
        if add:
            c.nops += add
            changed = True
    return changed


def finalize(items):
    alts = [it for it in items if isinstance(it, Alt)]
    combos = [{id(x): (m >> k) & 1 for k, x in enumerate(alts)} for m in range(1 << len(alts))]
    for ch in combos:
        wait_pass(linearize(items, ch))
    for ch in combos:
        hazard_pass(linearize(items, ch))
    out = []
    for it in flatten(items):
        w = []
        if it.vm_wait is not None: w.append(f'vmcnt({it.vm_wait})')
        if it.lgkm_wait is not None: w.append(f'lgkmcnt({it.lgkm_wait})')
        if w: out.append('    s_waitcnt ' + ' '.join(w))
        if it.nops: out.append(f'    s_nop {it.nops - 1}')
        if it.kind == 'raw':
            out.append(it.text)
        else:
            out.append('    ' + it.text)
    return out


class S(list):
    def e(self, text, **kw):
        last = None
        for line in text.strip().split('\n'):
            line = line.strip()
            if not line or line.startswith(';'):
                continue
            last = I(line, **kw)
            self.append(last)
        return last

    def raw(self, text, uses=()):
        r = Raw(text, uses)
        self.append(r)
        return r

    def barrier(self, vm=(), lgkm=('all',)):
        b = I('s_barrier')
        b.need_vm = list(vm); b.need_lgkm = list(lgkm)
        self.append(b)
        return b

    def wait(self, vm=(), lgkm=()):
        r = Raw('')
        r.need_vm = list(vm); r.need_lgkm = list(lgkm)
        self.append(r)
        return r


def weave(main, fill, start=0, end=None, pred=None):
    end = len(main) if end is None else end
    slots = [i for i in range(start, end) if pred is None or pred(main[i])]
    out = S()
    n = len(fill)
    at = {}
    for k in range(n):
        s = slots[min(len(slots) - 1, (k * len(slots)) // n)]
        at.setdefault(s, []).append(fill[k])
    for i, it in enumerate(main):
        out.append(it)
        for g in at.get(i, []):
            out.extend(g)
    return out


def v(a, n=1):
    return f'v{a}' if n == 1 else f'v[{a}:{a + n - 1}]'


def a(x, n=1):
    return f'a{x}' if n == 1 else f'a[{x}:{x + n - 1}]'


def s(x, n=1):
    return f's{x}' if n == 1 else f's[{x}:{x + n - 1}]'
```

```python
import numpy as np
def bf16_round_int(m):
    u = np.float32(m).view(np.uint32)
    u = int(u)
    u = (u + 0x7FFF + ((u >> 16) & 1)) >> 16 << 16
    return int(np.uint32(u).view(np.float32))
def t23_idx(m):
    r = bf16_round_int(m)
    assert r >= 512
    return (r - 512) // 4 if r < 1024 else 128 + (r - 1024) // 8
BASES = [0,1,2,3,4,5,6,7, 256,258,260,262, 512,516,768,772, 264,1024,1280,1536, 520,1792,2048,None]
def perm_consts(ks, lane):
    r = lane & 15; g = lane >> 4
    mu = r + 32*ks + 16 - 8*g
    k = [t23_idx(mu - e) for e in range(8)]
    a = k[7] >> 1
    sels = []
    for i in range(4):
        lo = k[2*i] - 2*a; hi = k[2*i+1] - 2*a
        assert 0 <= lo <= 3 and 0 <= hi <= 3
        sels.append(((2*hi+1) << 24) | ((2*hi) << 16) | ((2*lo+1) << 8) | (2*lo))
    return a, sels
def ks_class(ks):
    if ks <= 16: return None
    if ks <= 31: return (0, 17, 4)
    if ks == 32: return (1, 32, 0)
    return (2, 33, 2)
if __name__ == '__main__':
    for ks in range(17, 64):
        c, ref, step = ks_class(ks)
        for l in range(64):
            a, s = perm_consts(ks, l); a0, s0 = perm_consts(ref, l)
            assert s == s0 and a == a0 + step*(ks-ref), (ks, l)
    rng = np.random.default_rng(0)
    Kd = {m: rng.standard_normal() for m in set(bf16_round_int(m) for m in range(2048))}
    K = np.array([Kd[bf16_round_int(m)] for m in range(2048)])
    u = rng.standard_normal(2048)
    D = np.zeros((12, 64))
    for l in range(64):
        q = l & 31; hh = l >> 5
        for j in range(3):
            for i in range(4):
                b = BASES[8*j + 4*hh + i]
                D[4*j+i, l] = Kd.get(b + 8*q, np.nan) if b is not None else np.nan
    X = np.full(600, np.nan); X[544:584] = 0
    T = np.full(320, np.nan)
    for l in range(64):
        q = l & 31; hh = l >> 5
        y0 = 540 - 8*q - 4*hh
        X[y0:y0+4] = [D[3,l], D[2,l], D[1,l], D[0,l]]
        if hh == 0:
            y0 = 543 - (256 + 8*q + 7)
            X[y0:y0+8] = [D[8,l], D[7,l], D[6,l], D[6,l], D[6,l], D[5,l], D[4,l], D[4,l]]
        else:
            if q < 4:
                y0 = 543 - (512 + 8*q + 7)
                X[y0:y0+8] = [D[8,l], D[8,l], D[5,l], D[5,l], D[5,l], D[4,l], D[4,l], D[4,l]]
            T[2*q:2*q+2] = [D[4,l], D[5,l]]
            T[64+2*q:64+2*q+2] = [D[6,l], D[7,l]]
        for i in range(3):
            T[128 + 96*hh + q + 32*i] = D[9+i, l]
    for y in range(544): assert X[y] == K[543-y], y
    C = np.zeros((4, 576))
    for c in range(4): C[c] = X[3-c:3-c+576]
    U = np.zeros(286*8); U[240:] = u
    y = np.zeros(2048)
    for rho in range(8):
        for kap in range(8):
            ks = 8*kap + rho
            A = np.zeros((16, 32))
            for l in range(64):
                r = l & 15; g = l >> 4
                if ks <= 16:
                    yy = 524 - 32*ks - (r & 12) + 8*g
                    A[r, 8*g:8*g+8] = C[r & 3, yy:yy+8]
                else:
                    a, s = perm_consts(ks, l)
                    for i in range(4):
                        A[r, 8*g+2*i] = T[2*a + (s[i] & 0xff)//2]
                        A[r, 8*g+2*i+1] = T[2*a + ((s[i] >> 16) & 0xff)//2]
            for dl in range(8 - kap):
                B = np.zeros((32, 16))
                for l in range(64):
                    n = l & 15; g = l >> 4
                    ad = (16*(2*n+g) + 448 - 64*rho + 512*dl)//2
                    B[8*g:8*g+8, n] = U[ad:ad+8]
                Dm = A @ B
                ct = kap + dl
                for n in range(16):
                    y[256*ct + 16*n: 256*ct + 16*n + 16] += Dm[:, n]
    ref = np.convolve(K, u)[:2048]
    print('conv emu maxerr', np.abs(y - ref).max())
```

```python
import sys, math, struct
sys.path.insert(0, 'scratch')
from fw import *
from tables import perm_consts, ks_class

KN = 'parallel_sum__ssm_conv_s4__mixer_channel_mlp__prompt_kernel'
PROFILE = False
DUMPK = False

F1, F2, F3, F4 = 0, 2048, 4096, 5120
PROF = 0x10000
XNF, XNT, YT, W2F, HF = 0x100000, 0x380000, 0x600000, 0x880000, 0xA80000
DUMP = 0x2000000
LW1 = 0
LSSM, RSTR = 122880, 10144
LY2, LXN, LNP = 101888, 112384, 1312
CSTR, LX, LT, LU = 1216, 3648, 4864, 5504
LPART, PP, PW = 0, 336, 21504
LYL, LYB, YBP = 86016, 98304, 176
LDS_BYTES = 163840
sW, sXCD, sJ, sTB, sTG, sFG, sTT, sCGP, sCG = 3, 4, 5, 6, 7, 8, 9, 10, 11
sT0, sT1, sT2, sT3 = 12, 13, 14, 15
pX, pAre, pAim, pBre, pBim, pCre, pCim, pLdt = 16, 18, 20, 22, 24, 26, 28, 30
pDsk, pBx, pW1, pB1, pW2, pB2, pOut, pDbg, pWs = 32, 34, 36, 38, 40, 42, 44, 46, 48
sPC = 50
RX, RW1, RWS, ROUT, RDBG, RW2 = 52, 56, 60, 64, 68, 72
sREG, sO0, sO1, sO2, sO3, sSPIN, sO4, sO5 = 76, 77, 78, 79, 80, 81, 82, 83
STAMP_REGS = [88, 90, 92, 94, 96, 98, 100] + list(range(16, 48, 2))


def fbits(x):
    return '0x%08x' % struct.unpack('<I', struct.pack('<f', x))[0]


def lane_consts():
    C = {}
    def put(name, f): C[name] = [f(l) & 0xffffffff for l in range(64)]
    put('ln_rdF', lambda l: LY2 + (l & 7) * LNP + (l >> 3) * 16)
    put('ln_stF', lambda l: (l >> 3) * 512 + (l & 7) * 16)
    put('ln_rdT', lambda l: LXN + ((l & 15) >> 2) * LNP + (16 * (l >> 4) + 4 * (l & 3)) * 2)
    put('poll_all', lambda l: 128 * (l >> 2) + 16 * (l & 3))
    for t in range(3):
        put(f'w1a{t}', lambda l: ((64 * t + l) // 12) * 3072 + ((64 * t + l) % 12) * 16 - 1024 * t)
    put('g1_rd', lambda l: LW1 + (8 * (l >> 5) + ((l & 15) >> 2)) * 192 + (16 * ((l >> 4) & 1) + 4 * (l & 3)) * 2)
    put('h_ld', lambda l: (l >> 4) * 512 + (l & 15) * 16)
    put('y_dma', lambda l: (l >> 3) * 4096 + (l & 7) * 16)
    put('y_rd', lambda l: LYL + (4 * (l >> 4) + ((l & 15) >> 2)) * 128 + ((l & 3) >> 1) * 64 + (l & 1) * 8)
    put('yb_wr', lambda l: LYB + (l & 15) * YBP + (l >> 4) * 8)
    put('part_wr', lambda l: LPART + (l & 15) * PP + ((l >> 4) & 1) * 160 + (l >> 5) * 16)
    put('fin_part', lambda l: LPART + (min(l, 59) // 10) * PP + (min(l, 59) % 10) * 16)
    put('fin_yb', lambda l: LYB + (min(l, 59) // 10) * YBP + (min(l, 59) % 10) * 16)
    put('fin_g', lambda l: (min(l, 59) // 10) * 1280 + (min(l, 59) % 10) * 16)
    NCOMMON = len(C)
    put('kt_wr', lambda l: l * 144)
    put('kt_rd', lambda l: (8 * (((l & 15) >> 2) >> 1) + 2 * (l >> 5)) * 144 + (((l & 15) >> 2) & 1) * 64 + 32 * ((l >> 4) & 1) + 8 * (l & 3))
    put('x0_wr', lambda l: LX + 2 * (540 - 8 * (l & 31) - 4 * (l >> 5)))
    put('x1_wr', lambda l: LX + 2 * max(0, 280 - 8 * (l & 31) - 256 * (l >> 5)))
    put('t2_wr', lambda l: LT + 4 * (l & 31))
    put('t3_wr', lambda l: LT + 2 * (128 + 96 * (l >> 5) + (l & 31)))
    put('zero_wr', lambda l: LX + 2 * 544 + 16 * l if l < 5 else LU + 16 * (min(l, 34) - 5))
    put('cp_rd', lambda l: LX + 16 * (l % 18) + 2 * ((3 - l // 18) & 2))
    put('cp_wr', lambda l: (l // 18) * CSTR + 16 * (l % 18))
    put('ca_rd', lambda l: (l & 3) * CSTR + 2 * (12 - (l & 12) + 8 * (l >> 4)))
    put('cb_rd', lambda l: LU + 16 * (2 * (l & 15) + (l >> 4)))
    for c, ref in enumerate((17, 32, 33)):
        put(f'pa{c}', lambda l: LT + 4 * perm_consts(ref, l)[0])
    REL = list(C.keys())[NCOMMON:]
    put('cp_sh', lambda l: 16 * ((3 - l // 18) & 1))
    put('u_wr', lambda l: LSSM + (l & 3) * RSTR + LU + 16 * (30 + (l >> 2)))
    for c, ref in enumerate((17, 32, 33)):
        for i in range(4):
            put(f'sel{c}_{i}', lambda l: perm_consts(ref, l)[1][i])
    put('u_ld', lambda l: (l >> 2) * 10240 + (l & 3) * 16)
    put('y_st', lambda l: ((l >> 4) & 1) * 512 + ((l & 15) >> 2) * 128 + (l >> 5) * 64 + (l & 3) * 16)
    while len(C) % 4: put(f'pad{len(C)}', lambda l: 0)
    NS = len(C)
    for t in range(5):
        put(f'w2a{t}', lambda l: ((64 * t + l) // 40) * 1280 + ((64 * t + l) % 40) * 16)
    put('w2_rd', lambda l: LSSM + (16 * (l >> 5) + 4 * ((l >> 4) & 1) + ((l & 15) >> 2)) * 640 + 8 * (l & 3))
    while len(C) % 4: put(f'pad{len(C)}', lambda l: 0)
    assert NCOMMON % 4 == 0
    return C, NCOMMON, NS, REL


CONST, NCOMMON, NSCONST, RELC = lane_consts()
CNAMES = list(CONST.keys())

vTID, vL, vL16, vFLAG, vPOLL, vONE, vPOLL48 = 0, 1, 2, 3, 4, 5, 7
vPV = 8
vC0 = 12


class Gen:
    def __init__(self, role):
        self.role = role
        self.nstamp = 0
        self.stamp_names = []
        names = CNAMES[:NCOMMON] + (CNAMES[NCOMMON:NSCONST] if role == 'S' else CNAMES[NSCONST:])
        self.c = {n: vC0 + i for i, n in enumerate(names)}
        self.vfree = vC0 + len(names)
        self.lab = 0

    def stamp(self, st, name):
        if PROFILE:
            r = STAMP_REGS[self.nstamp]
            st.e(f's_memtime {s(r, 2)}')
            self.nstamp += 1
            self.stamp_names.append(name)

    def flag_store(self, st, soff):
        return st.e(f'buffer_store_dword {v(vONE)}, {v(vFLAG)}, {s(RWS, 4)}, {soff} offen sc1')

    def poll_issue(self, st, kind, dst, soff):
        if kind == 'all':
            return st.e(f'buffer_load_dwordx4 {v(dst, 4)}, {v(self.c["poll_all"])}, {s(RWS, 4)}, 0 offen sc1')
        if kind == 'dbg':
            return st.e(f'buffer_load_dword {v(dst)}, {v(vFLAG)}, {s(RDBG, 4)}, 0 offen sc1')
        return st.e(f'buffer_load_dword {v(dst)}, {v(vPOLL48 if kind == "g48" else vPOLL)}, {s(RWS, 4)}, {soff} offen sc1')

    def poll_check(self, st, kind, dst, soff, n):
        self.lab += 1
        L = f'L_{self.role}_p{self.lab}'
        tmp = S()
        self.poll_issue(tmp, kind, dst, soff)
        reload = tmp[0].text
        mask = (1 << n) - 1
        red = ''
        if kind == 'all':
            red = f'    v_and_b32 {v(dst)}, {v(dst)}, {v(dst+1)}\n    v_and_b32 {v(dst+2)}, {v(dst+2)}, {v(dst+3)}\n    v_and_b32 {v(dst)}, {v(dst)}, {v(dst+2)}\n'
        txt = f'''    s_cmp_lg_u32 {s(sW)}, 0
    s_cbranch_scc1 {L}_ok
    s_mov_b32 {s(sSPIN)}, 0
{L}_chk:
{red}    v_cmp_ne_u32 vcc, 1, {v(dst)}
    s_add_u32 {s(sSPIN)}, {s(sSPIN)}, 1
    s_and_b32 vcc_lo, vcc_lo, 0x{mask & 0xffffffff:x}
    s_and_b32 vcc_hi, vcc_hi, 0x{mask >> 32:x}
    s_cmp_eq_u64 vcc, 0
    s_cbranch_scc1 {L}_ok
    s_cmp_gt_u32 {s(sSPIN)}, 0x8000
    s_cbranch_scc1 {L}_ok
    {reload}
    s_waitcnt vmcnt(0)
    s_branch {L}_chk
{L}_ok:'''
        st.raw(txt, uses=[f'v{dst + i}' for i in range(4 if kind == 'all' else 1)])

    def start(self):
        st = S(); c = self.c
        S_ = self.role == 'S'
        groups = list(range(NCOMMON // 4)) + (list(range(NCOMMON // 4, NSCONST // 4)) if S_ else list(range(NSCONST // 4, len(CNAMES) // 4)))
        tmpa = 250
        cur = None
        for k, g in enumerate(groups):
            if cur is None or g // 4 != cur:
                cur = g // 4
                st.e(f'v_add_u32 {v(tmpa)}, {4096 * cur}, {v(vL16)}')
            st.e(f'global_load_dwordx4 {v(vC0 + 4 * k, 4)}, {v(tmpa)}, {s(sPC, 2)} offset:{1024 * (g % 4)}')
        return st

    def ln_loads(self, st, XR):
        t = 251
        st.e(f'''
        s_lshl_b32 {s(sT0)}, {s(sTB)}, 3
        s_lshl_b32 {s(sT1)}, {s(sW)}, 1
        s_add_u32 {s(sT0)}, {s(sT0)}, {s(sT1)}
        s_mul_i32 {s(sT0)}, {s(sT0)}, 1280
        v_lshrrev_b32 {v(t)}, 5, {v(vL)}
        v_mul_u32_u24 {v(t)}, 1280, {v(t)}
        v_and_b32 {v(t+1)}, 31, {v(vL)}
        v_lshl_add_u32 {v(t)}, {v(t+1)}, 3, {v(t)}
        ''')
        for j in range(5):
            st.e(f'buffer_load_dwordx2 {v(XR + 2 * j, 2)}, {v(t)}, {s(RX, 4)}, {s(sT0)} offen offset:{256 * j}')

    def reduce32(self, st, x, t):
        st.e(f'''
        v_add_f32_dpp {v(x)}, {v(x)}, {v(x)} quad_perm:[1,0,3,2] row_mask:0xf bank_mask:0xf
        v_add_f32_dpp {v(x)}, {v(x)}, {v(x)} quad_perm:[2,3,0,1] row_mask:0xf bank_mask:0xf
        v_add_f32_dpp {v(x)}, {v(x)}, {v(x)} row_half_mirror row_mask:0xf bank_mask:0xf
        v_add_f32_dpp {v(x)}, {v(x)}, {v(x)} row_mirror row_mask:0xf bank_mask:0xf
        v_mov_b32 {v(t)}, {v(x)}
        v_permlane16_swap_b32 {v(x)}, {v(t)}
        v_add_f32 {v(x)}, {v(x)}, {v(t)}
        ''')

    def ln(self, XR, B):
        st = S(); c = self.c
        U = B; PY = B + 20; PX = B + 30; M = B + 40; Q = B + 42; R = B + 44; T = B + 46; AD = B + 48; O = B + 50
        st.e(f'''
        v_lshrrev_b32 {v(AD)}, 5, {v(vTID)}
        v_mul_u32_u24 {v(AD)}, {LNP}, {v(AD)}
        v_and_b32 {v(T)}, 31, {v(vL)}
        v_lshl_add_u32 {v(AD)}, {v(T)}, 3, {v(AD)}
        v_add_u32 {v(AD)}, {LY2}, {v(AD)}
        ''')
        for j in range(10):
            st.e(f'v_lshlrev_b32 {v(U + 2 * j)}, 16, {v(XR + j)}')
            st.e(f'v_and_b32 {v(U + 2 * j + 1)}, 0xffff0000, {v(XR + j)}')
        st.e(f'v_pk_add_f32 {v(M, 2)}, {v(U, 2)}, {v(U + 2, 2)}')
        for j in range(2, 10):
            st.e(f'v_pk_add_f32 {v(M, 2)}, {v(M, 2)}, {v(U + 2 * j, 2)}')
        st.e(f'v_add_f32 {v(M)}, {v(M)}, {v(M + 1)}')
        self.reduce32(st, M, T)
        st.e(f'v_mul_f32 {v(M)}, {fbits(-1.0 / 640)}, {v(M)}')
        for j in range(10):
            st.e(f'v_pk_add_f32 {v(U + 2 * j, 2)}, {v(U + 2 * j, 2)}, {v(M, 2)} op_sel_hi:[1,0]')
        st.e(f'v_pk_mul_f32 {v(Q, 2)}, {v(U, 2)}, {v(U, 2)}')
        for j in range(1, 10):
            st.e(f'v_pk_fma_f32 {v(Q, 2)}, {v(U + 2 * j, 2)}, {v(U + 2 * j, 2)}, {v(Q, 2)}')
        st.e(f'v_add_f32 {v(Q)}, {v(Q)}, {v(Q + 1)}')
        self.reduce32(st, Q, T)
        st.e(f'''
        v_mul_f32 {v(Q)}, {fbits(1.0 / 640)}, {v(Q)}
        v_add_f32 {v(T)}, {fbits(1e-5)}, {v(Q)}
        v_rsq_f32 {v(R)}, {v(T)}
        v_mul_f32 {v(T)}, {v(R)}, {v(R)}
        v_fmaak_f32 {v(T)}, {v(T)}, {v(Q)}, {fbits(1e-5)}
        v_rsq_f32 {v(T)}, {v(T)}
        v_mul_f32 {v(R + 1)}, {v(R)}, {v(T)}
        ''')
        for (P, sel, off) in ((PY, 'op_sel:[0,1]', 0), (PX, 'op_sel_hi:[1,0]', LXN - LY2)):
            for j in range(10):
                st.e(f'v_pk_mul_f32 {v(T, 2)}, {v(U + 2 * j, 2)}, {v(R, 2)} {sel}')
                st.e(f'v_cvt_pk_bf16_f32 {v(P + j)}, {v(T)}, {v(T + 1)}')
            for j in range(5):
                st.e(f'ds_write_b64 {v(AD)}, {v(P + 2 * j, 2)} offset:{off + 256 * j}')
        st.e(f'''
        s_and_b32 {s(sT1)}, {s(sW)}, 1
        s_mul_i32 {s(sT1)}, {s(sT1)}, 5
        s_lshl_b32 {s(sT2)}, {s(sT1)}, 7
        v_add_u32 {v(c['ln_rdF'])}, {s(sT2)}, {v(c['ln_rdF'])}
        v_add_u32 {v(c['ln_rdT'])}, {s(sT2)}, {v(c['ln_rdT'])}
        ''')
        st.barrier()
        A = S(); Bq = S()
        A.e(f'''
        s_lshr_b32 {s(sT0)}, {s(sTB)}, 2
        s_mul_i32 {s(sT0)}, {s(sT0)}, 40960
        s_and_b32 {s(sT2)}, {s(sTB)}, 3
        s_lshl_b32 {s(sT2)}, {s(sT2)}, 7
        s_add_u32 {s(sT0)}, {s(sT0)}, {s(sT2)}
        s_lshl_b32 {s(sT1)}, {s(sT1)}, 12
        s_add_u32 {s(sT0)}, {s(sT0)}, {s(sT1)}
        s_add_u32 {s(sT0)}, {s(sT0)}, {XNF}
        ''')
        A2 = S()
        for i in range(5):
            A2.e(f'ds_read_b128 {v(U + 4 * i, 4)}, {v(c["ln_rdF"])} offset:{128 * i}')
        A = S(A2 + A)
        for i in range(5):
            lastA = A.e(f'buffer_store_dwordx4 {v(U + 4 * i, 4)}, {v(c["ln_stF"])}, {s(RWS, 4)}, {s(sT0)} offen sc1')
            if i < 4: A.e(f's_add_u32 {s(sT0)}, {s(sT0)}, 4096')
        for i in range(5):
            for tau in range(2):
                Bq.e(f'ds_read_b64_tr_b16 {v(U + 4 * i + 2 * tau, 2)}, {v(c["ln_rdT"])} offset:{128 * i + 4 * LNP * tau}')
        Bq.e(f'''
        s_mul_i32 {s(sT0)}, {s(sTB)}, 10240
        s_lshl_b32 {s(sT1)}, {s(sT1)}, 10
        s_add_u32 {s(sT0)}, {s(sT0)}, {s(sT1)}
        s_add_u32 {s(sT0)}, {s(sT0)}, {XNT}
        s_add_u32 {s(sT1)}, {s(sT0)}, 4096
        ''')
        for i in range(5):
            so = s(sT0) if i < 4 else s(sT1)
            lastB = Bq.e(f'buffer_store_dwordx4 {v(U + 4 * i, 4)}, {v(vL16)}, {s(RWS, 4)}, {so} offen offset:{1024 * (i % 4)} sc1')
        st.e(f's_cmp_ge_u32 {s(sW)}, 2')
        st.append(Alt('s_cbranch_scc1', A, Bq))
        self.ln_stores = [lastA, lastB]
        return st

    def w1_dma_groups(self):
        c = self.c
        gs = []
        for i in range(10):
            g = S()
            if i < 8:
                g.e(f'''
                s_add_u32 {s(sT0)}, {s(sO0)}, {i}
                s_and_b32 {s(sT0)}, {s(sT0)}, 7
                s_lshl_b32 {s(sT0)}, {s(sT0)}, 2
                s_add_u32 {s(sT0)}, {s(sT0)}, {s(sW)}
                ''')
            else:
                g.e(f's_add_u32 {s(sT0)}, {s(sW)}, {4 * i}')
            g.e(f'''
            s_mul_i32 m0, {s(sT0)}, 3072
            s_mul_i32 {s(sT0)}, {s(sT0)}, {16 * 3072}
            s_add_u32 {s(sO2)}, {s(sT0)}, {s(sO1)}
            ''')
            for t in range(3):
                last = g.e(f'buffer_load_dwordx4 {v(c[f"w1a{t}"])}, {s(RW1, 4)}, {s(sO2)} offen offset:{1024 * t} lds')
                gs.append(g); g = S()
        self.w1_last = last
        return gs

    def cmul(self, st, d, x, g):
        st.e(f'v_pk_mul_f32 {v(d, 2)}, {v(x, 2)}, {v(g, 2)} op_sel_hi:[1,0]')
        st.e(f'v_pk_fma_f32 {v(d, 2)}, {v(x, 2)}, {v(g, 2)}, {v(d, 2)} op_sel:[1,1,0] op_sel_hi:[0,1,1] neg_lo:[1,0,0]')

    def kgen_setup(self, r, PR, DT, B):
        st = S()
        G1, G8, BB, CC, a1, b1, a8, b8, m1, m8 = B, B + 2, B + 4, B + 6, B + 8, B + 9, B + 10, B + 11, B + 12, B + 13
        dst = [a1, b1, BB, BB + 1, CC, CC + 1]
        for k in range(6):
            if r == 0: st.e(f'v_lshlrev_b32 {v(dst[k])}, 16, {v(PR + k)}')
            elif r == 1: st.e(f'v_and_b32 {v(dst[k])}, 0xffff0000, {v(PR + k)}')
            else: st.e(f'v_lshlrev_b32 {v(dst[k])}, 16, {v(PR + 6 + k)}')
        st.e(f'''
        v_mul_f32 {v(a1)}, {v(a1)}, {v(DT + 1)}
        v_mul_f32 {v(b1)}, {v(b1)}, {v(DT + 2)}
        v_mul_f32 {v(a8)}, {fbits(8.0)}, {v(a1)}
        v_mul_f32 {v(b8)}, {fbits(8.0)}, {v(b1)}
        v_fract_f32 {v(b1)}, {v(b1)}
        v_fract_f32 {v(b8)}, {v(b8)}
        v_exp_f32 {v(m8)}, {v(a8)}
        v_cos_f32 {v(G8)}, {v(b8)}
        v_sin_f32 {v(G8 + 1)}, {v(b8)}
        v_exp_f32 {v(m1)}, {v(a1)}
        v_cos_f32 {v(G1)}, {v(b1)}
        v_sin_f32 {v(G1 + 1)}, {v(b1)}
        v_mul_f32 {v(G8)}, {v(G8)}, {v(m8)}
        v_mul_f32 {v(G8 + 1)}, {v(G8 + 1)}, {v(m8)}
        v_mul_f32 {v(G1)}, {v(G1)}, {v(m1)}
        v_mul_f32 {v(G1 + 1)}, {v(G1 + 1)}, {v(m1)}
        v_mul_f32 {v(BB)}, {v(BB)}, {v(DT)}
        v_mul_f32 {v(BB + 1)}, {v(BB + 1)}, {v(DT)}
        ''')
        return st

    def kgen_body(self, r, B, W, KD):
        st = S(); c = self.c
        G1, G8, BB, CC = B, B + 2, B + 4, B + 6
        RE, IM, FA, FB, G256, E, FF, EF = W, W + 4, W + 8, W + 10, W + 12, W + 14, W + 60, W + 92
        wr = c['kt_wr']; rd = c['kt_rd']
        for k in range(16):
            if k == 0:
                st.e(f'v_cvt_pk_bf16_f32 {v(RE)}, 1.0, {v(G8)}')
                st.e(f'v_cvt_pk_bf16_f32 {v(IM)}, 0, {v(G8 + 1)}')
            else:
                self.cmul(st, FA, G8 if k == 1 else FB, G8)
                self.cmul(st, FB, FA, G8)
                st.e(f'v_cvt_pk_bf16_f32 {v(RE + k % 4)}, {v(FA)}, {v(FB)}')
                st.e(f'v_cvt_pk_bf16_f32 {v(IM + k % 4)}, {v(FA + 1)}, {v(FB + 1)}')
            if k % 4 == 3:
                st.e(f'ds_write_b128 {v(wr)}, {v(RE, 4)} offset:{16 * (k // 4)}')
                st.e(f'ds_write_b128 {v(wr)}, {v(IM, 4)} offset:{64 + 16 * (k // 4)}')
        def reads(dst):
            L = []
            for sidx in range(8):
                for tau in range(2):
                    L.append(f'ds_read_b64_tr_b16 {v(dst + 4 * sidx + 2 * tau, 2)}, {v(rd)} offset:{(16 * (sidx >> 1) + 4 * (sidx & 1) + tau) * 144}')
            return L
        for x in reads(FF): st.e(x)
        self.cmul(st, G256, FB, G8)
        e = lambda p: E + 2 * p
        self.cmul(st, e(0), CC, BB)
        def pack(o):
            for k in range(4):
                p0, p1 = 8 * o + 2 * k, min(8 * o + 2 * k + 1, 22)
                st.e(f'v_cvt_pk_bf16_f32 {v(RE + k)}, {v(e(p0))}, {v(e(p1))}')
                st.e(f'v_cvt_pk_bf16_f32 {v(IM + k)}, -{v(e(p0) + 1)}, -{v(e(p1) + 1)}')
            st.e(f'ds_write_b128 {v(wr)}, {v(RE, 4)} offset:{16 * o}')
            st.e(f'ds_write_b128 {v(wr)}, {v(IM, 4)} offset:{64 + 16 * o}')
        for p in range(1, 8): self.cmul(st, e(p), e(p - 1), G1)
        pack(0)
        for i in range(4): self.cmul(st, e(8 + i), e(2 * i), G256)
        self.cmul(st, e(12), e(8), G256); self.cmul(st, e(13), e(10), G256)
        self.cmul(st, e(14), e(12), G256); self.cmul(st, e(15), e(13), G256)
        pack(1)
        self.cmul(st, e(16), e(8), G8)
        self.cmul(st, e(17), e(14), G256); self.cmul(st, e(18), e(17), G256); self.cmul(st, e(19), e(18), G256)
        self.cmul(st, e(20), e(12), G8)
        self.cmul(st, e(21), e(19), G256); self.cmul(st, e(22), e(21), G256)
        pack(2)
        tail = S()
        rs = reads(EF)
        for x in rs[:8]: tail.e(x)
        for sidx in range(8):
            cc = '0' if (r == 0 and sidx == 0) else v(KD, 16)
            tail.e(f'v_mfma_f32_32x32x16_bf16 {v(KD, 16)}, {v(EF + 4 * sidx, 4)}, {v(FF + 4 * sidx, 4)}, {cc}')
            if sidx < 4:
                tail.e(rs[8 + 2 * sidx]); tail.e(rs[9 + 2 * sidx])
        return st, tail

    def kbuild(self, KD, DSK, W):
        st = S(); c = self.c
        D = lambda i: v(KD + i)
        Z, P, Q, T2, R = W, W + 4, W + 8, W + 12, W + 14
        for i in range(4): st.e(f'v_mov_b32 {v(Z + i)}, 0')
        st.e(f'ds_write_b128 {v(c["zero_wr"])}, {v(Z, 4)}')
        st.e(f'''
        v_add_f32 {D(0)}, {D(0)}, {v(DSK)}
        v_cvt_pk_bf16_f32 {v(P)}, {D(3)}, {D(2)}
        v_cvt_pk_bf16_f32 {v(P + 1)}, {D(1)}, {D(0)}
        v_cvt_pk_bf16_f32 {v(Q)}, {D(8)}, {D(7)}
        v_cvt_pk_bf16_f32 {v(Q + 1)}, {D(6)}, {D(6)}
        v_cvt_pk_bf16_f32 {v(Q + 2)}, {D(6)}, {D(5)}
        v_cvt_pk_bf16_f32 {v(Q + 3)}, {D(4)}, {D(4)}
        v_cvt_pk_bf16_f32 {v(R)}, {D(9)}, {D(10)}
        v_cvt_pk_bf16_f32 {v(R + 1)}, {D(11)}, {D(11)}
        ds_write_b64 {v(c["x0_wr"])}, {v(P, 2)}
        ds_write_b16 {v(c["t3_wr"])}, {v(R)}
        ds_write_b16_d16_hi {v(c["t3_wr"])}, {v(R)} offset:64
        ds_write_b16 {v(c["t3_wr"])}, {v(R + 1)} offset:128
        s_mov_b32 exec_lo, 0
        v_cvt_pk_bf16_f32 {v(Q)}, {D(8)}, {D(8)}
        v_cvt_pk_bf16_f32 {v(Q + 1)}, {D(5)}, {D(5)}
        v_cvt_pk_bf16_f32 {v(Q + 2)}, {D(5)}, {D(4)}
        v_cvt_pk_bf16_f32 {v(T2)}, {D(4)}, {D(5)}
        v_cvt_pk_bf16_f32 {v(T2 + 1)}, {D(6)}, {D(7)}
        ds_write2_b32 {v(c["t2_wr"])}, {v(T2)}, {v(T2 + 1)} offset0:0 offset1:32
        s_mov_b32 exec_lo, -1
        s_mov_b32 exec_hi, 15
        ds_write_b128 {v(c["x1_wr"])}, {v(Q, 4)}
        s_mov_b32 exec_hi, -1
        ''')
        SRC, O = W + 16, W + 40
        for p in range(4):
            b = SRC + 6 * p
            st.e(f'ds_read2_b32 {v(b, 2)}, {v(c["cp_rd"])} offset0:{72 * p} offset1:{72 * p + 1}')
            st.e(f'ds_read2_b32 {v(b + 2, 2)}, {v(c["cp_rd"])} offset0:{72 * p + 2} offset1:{72 * p + 3}')
            st.e(f'ds_read_b32 {v(b + 4)}, {v(c["cp_rd"])} offset:{288 * p + 16}')
        for p in range(4):
            b = SRC + 6 * p
            for i in range(4):
                st.e(f'v_alignbit_b32 {v(O + 4 * p + i)}, {v(b + i + 1)}, {v(b + i)}, {v(c["cp_sh"])}')
            st.e(f'ds_write_b128 {v(c["cp_wr"])}, {v(O + 4 * p, 4)} offset:{288 * p}')
        return st

    def w2job_load(self):
        st = S(); c = self.c
        st.e(f'''
        s_lshr_b32 {s(sT0)}, {s(sCG)}, 1
        s_lshl_b32 {s(sT0)}, {s(sT0)}, 2
        s_add_u32 {s(sT0)}, {s(sT0)}, {s(sW)}
        s_mul_i32 {s(sT0)}, {s(sT0)}, {8 * 1280}
        s_and_b32 {s(sT1)}, {s(sCG)}, 1
        s_mul_i32 {s(sT1)}, {s(sT1)}, 640
        s_add_u32 {s(sT0)}, {s(sT0)}, {s(sT1)}
        s_mul_i32 {s(sT1)}, {s(sW)}, 5120
        ''')
        for t in range(5):
            st.e(f's_add_u32 m0, {s(sT1)}, {LSSM + 1024 * t}')
            last = st.e(f'buffer_load_dwordx4 {v(c[f"w2a{t}"])}, {s(RW2, 4)}, {s(sT0)} offen lds')
        self.w2j_last = last
        return st

    def w2job_store(self, W):
        st = S(); c = self.c
        st.e(f'''
        s_mul_i32 {s(sT0)}, {s(sW)}, 160
        v_add_u32 {v(c["w2_rd"])}, {s(sT0)}, {v(c["w2_rd"])}
        s_mul_i32 {s(sT0)}, {s(sCG)}, 20
        s_mul_i32 {s(sT1)}, {s(sW)}, 5
        s_add_u32 {s(sT0)}, {s(sT0)}, {s(sT1)}
        s_lshl_b32 {s(sT0)}, {s(sT0)}, 10
        s_add_u32 {s(sT0)}, {s(sT0)}, {W2F}
        s_add_u32 {s(sT1)}, {s(sT0)}, 4096
        ''')
        for i in range(5):
            for tau in range(2):
                st.e(f'ds_read_b64_tr_b16 {v(W + 4 * i + 2 * tau, 2)}, {v(c["w2_rd"])} offset:{32 * i + 8 * 640 * tau}')
        for i in range(5):
            so = s(sT0) if i < 4 else s(sT1)
            last = st.e(f'buffer_store_dwordx4 {v(W + 4 * i, 4)}, {v(vL16)}, {s(RWS, 4)}, {so} offen offset:{1024 * (i % 4)} sc1')
        self.w2j_st = last
        return st

    def gemm1_init(self, ACC, B1, W):
        st = S()
        st.e(f'v_cmp_gt_u32 vcc, 32, {v(vL)}')
        for i in range(1, 4):
            st.e(f'v_mov_b32 {v(W + i)}, 0'); st.e(f'v_mov_b32 {v(W + 4 + i)}, 0')
        st.e(f'v_mov_b32 {v(W + 4)}, 0x3f80')
        for ft in range(3):
            st.e(f'v_cndmask_b32 {v(W)}, 0, {v(B1 + ft)}, vcc')
            st.e(f'v_mfma_f32_32x32x16_bf16 {v(ACC + 16 * ft, 16)}, {v(W, 4)}, {v(W + 4, 4)}, 0')
        return st

    def xnf_loads(self):
        gs = []
        for ks in range(40):
            g = S()
            if ks % 4 == 0 and ks:
                g.e(f's_add_u32 {s(sO3)}, {s(sO3)}, 4096')
            g.e(f'buffer_load_dwordx4 {a(4 * ks, 4)}, {v(vL16)}, {s(RWS, 4)}, {s(sO3)} offen offset:{1024 * (ks % 4)} sc1')
            gs.append(g)
        return gs

    def gemm1(self, ACC, AF, RD2, extra):
        c = self.c
        st = S()
        ld = self.xnf_loads()
        NPRE = 10
        for g in ld[:NPRE]: st.extend(g)
        def rd(ks, ft):
            L = []
            for tau in range(2):
                off = (16 * ks + 4 * tau) * 192 + 64 * ft
                base = c['g1_rd']
                if off >= 61440: off -= 61440; base = RD2
                L.append(f'ds_read_b64_tr_b16 {v(AF + 12 * (ks % 3) + 4 * ft + 2 * tau, 2)}, {v(base)} offset:{off}')
            return L
        for ks in range(2):
            for ft in range(3):
                for x in rd(ks, ft): st.e(x)
        pend = ld[NPRE:] + extra
        m = 0
        for ks in range(40):
            for ft in range(3):
                st.e(f'v_mfma_f32_32x32x16_bf16 {v(ACC + 16 * ft, 16)}, {v(AF + 12 * (ks % 3) + 4 * ft, 4)}, {a(4 * ks, 4)}, {v(ACC + 16 * ft, 16)}')
                if ks + 2 < 40:
                    for x in rd(ks + 2, ft): st.e(x)
                m += 1
                if m % 2 == 0 and pend:
                    st.extend(pend.pop(0))
        assert not pend
        return st

    def gelu(self, ACC, W, fill):
        st = S()
        K, T, O = W, W + 2, W + 12
        c0 = -2.0 * 0.7978845608028654 * math.log2(math.e)
        st.e(f'v_mov_b32 {v(K)}, {fbits(c0 * 0.044715)}')
        st.e(f'v_mov_b32 {v(K + 1)}, {fbits(c0)}')
        fill = list(fill)
        n = 0
        for ft in range(3):
            for jj in range(2):
                ob = O + 4 * ((2 * ft + jj) % 2)
                for h in range(2):
                    z = [ACC + 16 * ft + 8 * jj + 4 * h, ACC + 16 * ft + 8 * jj + 4 * h + 2]
                    t = [T, T + 2]
                    for k in range(2): st.e(f'v_pk_mul_f32 {v(t[k], 2)}, {v(z[k], 2)}, {v(z[k], 2)}')
                    for k in range(2): st.e(f'v_pk_fma_f32 {v(t[k], 2)}, {v(t[k], 2)}, {v(K, 2)}, {v(K, 2)} op_sel:[0,0,1] op_sel_hi:[1,0,1]')
                    for k in range(2): st.e(f'v_pk_mul_f32 {v(t[k], 2)}, {v(t[k], 2)}, {v(z[k], 2)}')
                    for k in range(4): st.e(f'v_exp_f32 {v(T + k)}, {v(T + k)}')
                    for k in range(2): st.e(f'v_pk_add_f32 {v(t[k], 2)}, {v(t[k], 2)}, 1.0 op_sel_hi:[1,0]')
                    for k in range(4): st.e(f'v_rcp_f32 {v(T + k)}, {v(T + k)}')
                    for k in range(2): st.e(f'v_pk_mul_f32 {v(t[k], 2)}, {v(t[k], 2)}, {v(z[k], 2)}')
                    for k in range(2): st.e(f'v_cvt_pk_bf16_f32 {v(ob + 2 * h + k)}, {v(t[k])}, {v(t[k] + 1)}')
                    n += 1
                    if h == 1:
                        i = 2 * ft + jj
                        if i == 4: st.e(f's_add_u32 {s(sO3)}, {s(sO3)}, 4096')
                        self.h_last = st.e(f'buffer_store_dwordx4 {v(ob, 4)}, {v(vL16)}, {s(RWS, 4)}, {s(sO3)} offen offset:{1024 * (i % 4)} sc1')
                    if n < 12:
                        k = (len(fill) + (11 - n)) // (12 - n)
                        for _ in range(k): st.extend(fill.pop(0))
        assert not fill
        return st

    def w2f_loads(self):
        gs = []
        order = list(range(8, 12)) + list(range(0, 8))
        for k in order:
            for dt in range(5):
                g = S()
                if dt == 0: g.e(f's_add_u32 {s(sO5)}, {s(sO4)}, {k * 40960}')
                if dt == 4: g.e(f's_add_u32 {s(sO5)}, {s(sO5)}, 4096')
                g.e(f'buffer_load_dwordx4 {a(20 * k + 4 * dt, 4)}, {v(vL16)}, {s(RWS, 4)}, {s(sO5)} offen offset:{1024 * (dt % 4)} sc1')
                gs.append(g)
        return gs

    def h_loads(self, hreg):
        gs = []
        for t16 in range(4):
            for k in range(12):
                g = S()
                if k % 2 == 0:
                    g.e(f's_add_u32 {s(sO1)}, {s(sO0)}, {(t16 >> 1) * 98304 + k * 2048}')
                g.e(f'buffer_load_dwordx4 {hreg(12 * t16 + k)}, {v(self.c["h_ld"])}, {s(RWS, 4)}, {s(sO1)} offen offset:{(k % 2) * 2048 + (t16 & 1) * 256} sc1')
                gs.append(g)
        return gs

    def conv_frag_loads(self, rho, FA, FB, RAW):
        c = self.c
        rds, prm = [], []
        for kap in range(2, 8):
            ks = 8 * kap + rho
            cl = ks_class(ks)
            if cl is None: continue
            ci, ref, step = cl
            o = step * (ks - ref)
            r = RAW + 2 * (kap - 2)
            rds.append(S([I(f'ds_read2_b32 {v(r, 2)}, {v(c[f"pa{ci}"])} offset0:{o} offset1:{o + 1}')]))
            for hh in range(2):
                prm.append(S([I(f'v_perm_b32 {v(FA + 4 * kap + i)}, {v(r + 1)}, {v(r)}, {v(c[f"sel{ci}_{i}"])}') for i in (2 * hh, 2 * hh + 1)]))
        for kap in range(8):
            ks = 8 * kap + rho
            if ks_class(ks) is None:
                for hh in range(2):
                    rds.append(S([I(f'ds_read_b64 {v(FA + 4 * kap + 2 * hh, 2)}, {v(c["ca_rd"])} offset:{2 * (512 - 32 * ks) + 8 * hh}')]))
        for dl in range(8):
            rds.append(S([I(f'ds_read_b128 {v(FB + 4 * dl, 4)}, {v(c["cb_rd"])} offset:{448 - 64 * rho + 512 * dl}')]))
        return rds, prm

    def conv(self, ACC, FR, RAW, B2T, fills):
        st = S()
        buf = lambda rho: (FR + 64 * (rho & 1), FR + 64 * (rho & 1) + 32)
        rds, prm = self.conv_frag_loads(0, *buf(0), RAW)
        for g in rds + prm: st.extend(g)
        for rho in range(8):
            FA, FB = buf(rho)
            nxt = []
            if rho < 7:
                rds, prm = self.conv_frag_loads(rho + 1, *buf(rho + 1), RAW)
                nxt = rds + prm
            ex = list(fills[rho])
            slots = [[] for _ in range(36)]
            free = list(range(36))
            exs = [(k * 36) // len(ex) + 1 for k in range(len(ex))] if ex else []
            for k, p in enumerate(exs):
                slots[min(p, 35)].append(ex[k])
            free = [p for p in range(36) if not slots[p]]
            if len(free) < len(nxt): free = list(range(36))
            for k, g in enumerate(nxt):
                slots[free[(k * len(free)) // len(nxt)]].append(g)
            m = 0
            for kap in range(8):
                for dl in range(8 - kap):
                    ct = kap + dl
                    cc = v(B2T, 4) if (rho == 0 and kap == 0) else v(ACC + 4 * ct, 4)
                    st.e(f'v_mfma_f32_16x16x32_bf16 {v(ACC + 4 * ct, 4)}, {v(FA + 4 * kap, 4)}, {v(FB + 4 * dl, 4)}, {cc}')
                    for g in slots[m]: st.extend(g)
                    m += 1
        return st

    def conv_epi(self, ACC, P):
        st = S(); c = self.c
        st.e(f'''
        s_lshl_b32 {s(sT0)}, {s(sCG)}, 2
        s_add_u32 {s(sT0)}, {s(sT0)}, {s(sW)}
        s_lshl_b32 {s(sT0)}, {s(sT0)}, 12
        s_add_u32 {s(sT0)}, {s(sT0)}, {YT}
        ''')
        for ct in range(8):
            for i in range(2):
                st.e(f'v_cvt_pk_bf16_f32 {v(P + 2 * ct + i)}, {v(ACC + 4 * ct + 2 * i)}, {v(ACC + 4 * ct + 2 * i + 1)}')
        for sp in range(4):
            for i in range(2):
                st.e(f'v_permlane16_swap_b32 {v(P + 4 * sp + i)}, {v(P + 4 * sp + 2 + i)}')
        for sp in range(4):
            self.y_last = st.e(f'buffer_store_dwordx4 {v(P + 4 * sp, 4)}, {v(c["y_st"])}, {s(RWS, 4)}, {s(sT0)} offen offset:{1024 * sp} sc1')
        return st

    def gemm2(self, ACC, hreg, fills):
        st = S(); c = self.c
        m = 0
        for t16 in range(4):
            A0 = ACC + 20 * (t16 & 1)
            for k in range(12):
                for dt in range(5):
                    cc = '0' if k == 0 else v(A0 + 4 * dt, 4)
                    st.e(f'v_mfma_f32_16x16x32_bf16 {v(A0 + 4 * dt, 4)}, {a(20 * k + 4 * dt, 4)}, {hreg(12 * t16 + k)}, {cc}')
                    if t16 > 0 and k in (2, 3, 4, 5, 6) and dt == 2:
                        P0 = ACC + 20 * ((t16 - 1) & 1)
                        st.e(f'ds_write_b128 {v(c["part_wr"])}, {v(P0 + 4 * (k - 2), 4)} offset:{(t16 - 1) * 16 * PP + 32 * (k - 2)}')
                    for g in fills.get(m, []): st.extend(g)
                    m += 1
        tail = S()
        for dt in range(5):
            tail.e(f'ds_write_b128 {v(c["part_wr"])}, {v(ACC + 20 + 4 * dt, 4)} offset:{3 * 16 * PP + 32 * dt}')
        return st, tail

    def final(self, XF, W):
        st = S(); c = self.c
        st.e(f's_mov_b32 exec_hi, 0x0fffffff')
        for i in range(3):
            b = W + 36 * i
            for w in range(4):
                for h in range(2):
                    off = w * PW + 6 * i * PP + 160 * h
                    base = c['fin_part']
                    if off >= 2 * PW: off -= 2 * PW; base = W + 108
                    st.e(f'ds_read_b128 {v(b + 8 * w + 4 * h, 4)}, {v(base)} offset:{off}')
            st.e(f'ds_read_b128 {v(b + 32, 4)}, {v(c["fin_yb"])} offset:{6 * i * YBP}')
        T = W + 110
        for i in range(3):
            b = W + 36 * i
            for k in range(4):
                st.e(f'v_pk_add_f32 {v(b + 2 * k, 2)}, {v(b + 2 * k, 2)}, {v(b + 8 + 2 * k, 2)}')
                st.e(f'v_pk_add_f32 {v(b + 16 + 2 * k, 2)}, {v(b + 16 + 2 * k, 2)}, {v(b + 24 + 2 * k, 2)}')
                st.e(f'v_lshlrev_b32 {v(T)}, 16, {v(XF + 4 * i + k)}')
                st.e(f'v_and_b32 {v(T + 1)}, 0xffff0000, {v(XF + 4 * i + k)}')
                st.e(f'v_pk_add_f32 {v(b + 2 * k, 2)}, {v(b + 2 * k, 2)}, {v(T, 2)}')
                st.e(f'v_lshlrev_b32 {v(T)}, 16, {v(b + 32 + k)}')
                st.e(f'v_and_b32 {v(T + 1)}, 0xffff0000, {v(b + 32 + k)}')
                st.e(f'v_pk_add_f32 {v(b + 16 + 2 * k, 2)}, {v(b + 16 + 2 * k, 2)}, {v(T, 2)}')
                st.e(f'v_pk_add_f32 {v(b + 2 * k, 2)}, {v(b + 2 * k, 2)}, {v(b + 16 + 2 * k, 2)}')
                st.e(f'v_cvt_pk_bf16_f32 {v(b + 32 + k)}, {v(b + 2 * k)}, {v(b + 2 * k + 1)}')
            if i == 2: st.e('s_mov_b32 exec_hi, 0xff')
            st.e(f'buffer_store_dwordx4 {v(b + 32, 4)}, {v(c["fin_g"])}, {s(ROUT, 4)}, {s(sO2)} offen')
            if i < 2: st.e(f's_add_u32 {s(sO2)}, {s(sO2)}, {6 * 1280}')
        st.e('s_mov_b32 exec_hi, -1')
        return st

    def build(self):
        c = self.c
        S_ = self.role == 'S'
        V = (self.vfree + 3) // 4 * 4
        st = S()
        B1 = V; DT = V + 4; DSK = V + 7; B2T = V + 8; RD2 = V + 3
        V += 12
        KD = V; V += 16
        PR = V; XR = V + 12; W = V + 24
        st += self.start()
        st.e('s_waitcnt lgkmcnt(0)')
        self.stamp(st, 'karg')
        for R, p, n in ((RX, pX, 2621440), (RWS, pWs, 0x10000000), (RW1, pW1, 640 * 1536 * 2), (ROUT, pOut, 2621440), (RDBG, pDbg, 256), (RW2, pW2, 640 * 1536 * 2)):
            st.e(f'''
            s_mov_b32 {s(R)}, {s(p)}
            s_mov_b32 {s(R + 1)}, {s(p + 1)}
            s_mov_b32 {s(R + 2)}, {n}
            s_mov_b32 {s(R + 3)}, 0x20000
            ''')
            if R == RX:
                self.ln_loads(st, XR)
        clr = None
        if not S_:
            A = S()
            for i in range(4): A.e(f'v_mov_b32 {v(W + i)}, 0')
            A.e(f's_mov_b32 {s(sT0)}, 4096')
            for i in range(6):
                clr = A.e(f'buffer_store_dwordx4 {v(W, 4)}, {v(vL16)}, {s(RWS, 4)}, {s(sT0) if i >= 4 else 0} offen offset:{1024 * (i % 4)} sc1')
            x = A.e(f'buffer_store_dword {v(vONE)}, {v(vFLAG)}, {s(RDBG, 4)}, 0 offen sc1')
            x.need_vm = [clr]
            st.e(f's_lshl_b32 {s(sT0)}, {s(sW)}, 8')
            st.e(f's_add_u32 {s(sT0)}, {s(sT0)}, s2')
            st.e(f's_cmp_lg_u32 {s(sT0)}, 255')
            st.append(Alt('s_cbranch_scc1', A, S()))
        t = 252
        if S_:
            st.e(f'''
            s_lshl_b32 {s(sT0)}, {s(sCG)}, 2
            s_add_u32 {s(sT0)}, {s(sT0)}, {s(sW)}
            s_mul_i32 {s(sT1)}, {s(sT0)}, 384
            s_lshl_b32 {s(sT0)}, {s(sT0)}, 1
            v_lshl_add_u32 {v(t)}, {v(vL)}, 2, {s(sT1)}
            v_lshl_add_u32 {v(t + 1)}, {v(vL)}, 1, {s(sT1)}
            v_mov_b32 {v(t + 2)}, {s(sT0)}
            global_load_ushort {v(DT)}, {v(t + 2)}, {s(pLdt, 2)}
            ''')
            for k, p in enumerate((pAre, pAim, pBre, pBim, pCre, pCim)):
                st.e(f'global_load_dword {v(PR + k)}, {v(t)}, {s(p, 2)}')
            for k, p in enumerate((pAre, pAim, pBre, pBim, pCre, pCim)):
                st.e(f'global_load_ushort {v(PR + 6 + k)}, {v(t + 1)}, {s(p, 2)} offset:256')
            st.e(f'global_load_ushort {v(DSK)}, {v(t + 2)}, {s(pDsk, 2)}')
            st.e(f'global_load_ushort {v(B2T)}, {v(t + 2)}, {s(pB2, 2)}')
        else:
            st += self.w2job_load()
        st.e(f'''
        s_mul_i32 {s(sO1)}, {s(sFG)}, 192
        v_and_b32 {v(t)}, 31, {v(vL)}
        v_lshl_add_u32 {v(t)}, {v(t)}, 1, {s(sO1)}
        ''')
        for ft in range(3):
            st.e(f'global_load_ushort {v(B1 + ft)}, {v(t)}, {s(pB1, 2)} offset:{64 * ft}')
        st.e(f'''
        s_and_b32 {s(sO0)}, {s(sJ)}, 3
        s_lshl_b32 {s(sO0)}, {s(sO0)}, 1
        s_mul_i32 {s(sREG)}, {s(sW)}, {RSTR}
        s_add_u32 {s(sREG)}, {s(sREG)}, {LSSM}
        s_mul_i32 {s(sO4)}, {s(sW)}, 480
        s_mul_i32 {s(sT0)}, {s(sCGP)}, 5
        s_add_u32 {s(sO4)}, {s(sO4)}, {s(sT0)}
        s_lshl_b32 {s(sO4)}, {s(sO4)}, 10
        s_add_u32 {s(sO4)}, {s(sO4)}, {W2F}
        ''')
        st.e(f'v_add_u32 {v(RD2)}, 61440, {v(c["g1_rd"])}')
        st.e(f'v_cmp_gt_u32 vcc, 64, {v(vTID)}')
        st.e(f'v_cndmask_b32 {v(c["poll_all"])}, {v(vFLAG)}, {v(c["poll_all"])}, vcc')
        st.e(f'''
        s_mul_i32 {s(sT0)}, {s(sW)}, {PW}
        v_add_u32 {v(c['part_wr'])}, {s(sT0)}, {v(c['part_wr'])}
        s_mul_i32 {s(sT0)}, {s(sW)}, {16 * PP}
        v_add_u32 {v(c['fin_part'])}, {s(sT0)}, {v(c['fin_part'])}
        s_mul_i32 {s(sT0)}, {s(sW)}, {16 * YBP}
        v_add_u32 {v(c['fin_yb'])}, {s(sT0)}, {v(c['fin_yb'])}
        v_add_u32 {v(c['yb_wr'])}, {s(sT0)}, {v(c['yb_wr'])}
        s_lshl_b32 {s(sT0)}, {s(sW)}, 4
        v_add_u32 {v(c['y_rd'])}, {s(sT0)}, {v(c['y_rd'])}
        ''')
        if S_:
            for n in RELC: st.e(f'v_add_u32 {v(c[n])}, {s(sREG)}, {v(c[n])}')
            st.e(f's_lshl_b32 {s(sT0)}, {s(sW)}, 10')
            st.e(f'v_add_u32 {v(c["u_wr"])}, {s(sT0)}, {v(c["u_wr"])}')
        st.wait(vm=[])
        lnst = self.ln(XR, W)
        if PROFILE:
            x = st.raw('', uses=[f'v{XR + 9}'])
            self.stamp(st, 'xdata')
        st += lnst
        self.poll_issue(st, 'dbg', vPV, None)
        self.stamp(st, 'ln')
        dma = self.w1_dma_groups()
        def sig1(extra_vm=()):
            b = S()
            self.poll_check(b, 'dbg', vPV, None, 1)
            b.e(f'''
            s_lshr_b32 {s(sT1)}, {s(sTB)}, 4
            s_lshl_b32 {s(sT1)}, {s(sT1)}, 7
            s_and_b32 {s(sT2)}, {s(sTB)}, 15
            s_lshl_b32 {s(sT2)}, {s(sT2)}, 2
            s_add_u32 {s(sT1)}, {s(sT1)}, {s(sT2)}
            ''')
            b.barrier(vm=self.ln_stores + list(extra_vm))
            self.flag_store(b, s(sT1))
            return b
        def pollF1():
            b = S()
            b.e(f's_lshl_b32 {s(sT3)}, {s(sTG)}, 7')
            self.poll_issue(b, 'grp', vPV, s(sT3))
            return b
        ACC1 = W; AF = W + 48; GW = W + 84
        if S_:
            SB = W; KW = W + 16
            st.e(f'''
            v_lshlrev_b32 {v(DT)}, 16, {v(DT)}
            v_mul_f32 {v(DT)}, {fbits(math.log2(math.e))}, {v(DT)}
            v_exp_f32 {v(DT)}, {v(DT)}
            v_cvt_pk_bf16_f32 {v(DT)}, 0, {v(DT)}
            v_mul_f32 {v(DT + 1)}, {fbits(math.log2(math.e))}, {v(DT)}
            v_mul_f32 {v(DT + 2)}, {fbits(0.5 / math.pi)}, {v(DT)}
            v_cmp_eq_u32 vcc, 0, {v(vL)}
            v_lshlrev_b32 {v(DSK)}, 16, {v(DSK)}
            v_lshlrev_b32 {v(B2T)}, 16, {v(B2T)}
            v_cndmask_b32 {v(DSK)}, 0, {v(DSK)}, vcc
            v_mov_b32 {v(B2T + 1)}, {v(B2T)}
            v_mov_b32 {v(B2T + 2)}, {v(B2T)}
            v_mov_b32 {v(B2T + 3)}, {v(B2T)}
            ''')
            st += self.kgen_setup(0, PR, DT, SB)
            isw = lambda it: it.op == 'ds_write_b128'
            for r in range(3):
                body, tail = self.kgen_body(r, SB, KW, KD)
                fl = dma[10 * r:10 * r + 10]
                if r == 2: fl = fl + [pollF1()]
                body = weave(body, fl, pred=isw)
                st += body
                if r < 2:
                    su = self.kgen_setup(r + 1, PR, DT, SB)
                    tail = weave(tail, [su[i:i + 3] for i in range(0, len(su), 3)], pred=lambda it: it.kind == 'mfma')
                st += tail
                if r == 0: st += sig1()
                self.stamp(st, f'kg{r}')
            if DUMPK:
                st.e(f's_lshl_b32 {s(sT0)}, {s(sCG)}, 2\ns_add_u32 {s(sT0)}, {s(sT0)}, {s(sW)}\ns_lshl_b32 {s(sT0)}, {s(sT0)}, 12\ns_add_u32 {s(sT0)}, {s(sT0)}, {DUMP}')
                for i in range(4):
                    st.e(f'buffer_store_dwordx4 {v(KD + 4 * i, 4)}, {v(vL16)}, {s(RWS, 4)}, {s(sT0)} offen offset:{1024 * i}')
            st += self.kbuild(KD, DSK, GW)
            self.stamp(st, 'kbuild')
        else:
            for g in dma[:24]: st += g
            st += sig1([self.w2j_last])
            st += self.w2job_store(W)
            for g in dma[24:]: st += g
            st.e(f'''
            s_and_b32 {s(sT1)}, {s(sCG)}, 1
            s_lshl_b32 {s(sT1)}, {s(sT1)}, 8
            s_lshr_b32 {s(sT2)}, {s(sCG)}, 1
            s_lshl_b32 {s(sT2)}, {s(sT2)}, 2
            s_add_u32 {s(sT1)}, {s(sT1)}, {s(sT2)}
            s_add_u32 {s(sT1)}, {s(sT1)}, {F4}
            ''')
            st.barrier(vm=[self.w2j_st])
            self.flag_store(st, s(sT1))
            st += pollF1()
            self.stamp(st, 'w2job')
        st += self.gemm1_init(ACC1, B1, GW)
        st.e(f'''
        s_lshl_b32 {s(sO3)}, {s(sTG)}, 2
        s_add_u32 {s(sO3)}, {s(sO3)}, {s(sW)}
        s_mul_i32 {s(sO2)}, {s(sO3)}, 98304
        s_mul_i32 {s(sO3)}, {s(sO3)}, 40960
        s_add_u32 {s(sO3)}, {s(sO3)}, {XNF}
        ''')
        self.poll_check(st, 'grp', vPV, s(sT3), 16)
        st.barrier(vm=[self.w1_last])
        self.stamp(st, 'h1')
        ex = []
        g = S()
        g.e(f'''
        s_lshr_b32 {s(sT3)}, {s(sCGP)}, 2
        s_lshl_b32 {s(sT3)}, {s(sT3)}, 8
        s_add_u32 {s(sT3)}, {s(sT3)}, {F4}
        ''')
        self.poll_issue(g, 'g48', 6, s(sT3))
        ex.append(g)
        if S_:
            g = S(); self.poll_issue(g, 'all', vPV, None); ex.append(g)
        st += self.gemm1(ACC1, AF, RD2, ex)
        self.poll_check(st, 'g48', 6, s(sT3), 48)
        if S_: self.poll_check(st, 'all', vPV, None, 64)
        st.e(f'''
        s_mul_i32 {s(sO3)}, {s(sFG)}, {3 * 2048}
        s_add_u32 {s(sO3)}, {s(sO3)}, {s(sO2)}
        s_add_u32 {s(sO3)}, {s(sO3)}, {HF}
        ''')
        st.barrier()
        self.stamp(st, 'gemm1')
        w2l = self.w2f_loads()
        UR = GW + 24
        if S_:
            st.e(f'''
            s_mul_i32 {s(sT0)}, {s(sW)}, {64 * 10240}
            s_lshl_b32 {s(sT1)}, {s(sCG)}, 6
            s_add_u32 {s(sT0)}, {s(sT0)}, {s(sT1)}
            s_add_u32 {s(sT0)}, {s(sT0)}, {XNT}
            ''')
            for i in range(4):
                st.e(f'buffer_load_dwordx4 {v(UR + 4 * i, 4)}, {v(c["u_ld"])}, {s(RWS, 4)}, {s(sT0)} offen sc1')
                if i < 3: st.e(f's_add_u32 {s(sT0)}, {s(sT0)}, {16 * 10240}')
        NG = 16
        st += self.gelu(ACC1, GW, w2l[:NG])
        w2l = w2l[NG:]
        self.stamp(st, 'gelu')
        def sig2():
            b = S()
            b.e(f'''
            s_lshl_b32 {s(sT1)}, {s(sTG)}, 7
            s_lshl_b32 {s(sT2)}, {s(sFG)}, 2
            s_add_u32 {s(sT1)}, {s(sT1)}, {s(sT2)}
            s_add_u32 {s(sT1)}, {s(sT1)}, {F2}
            ''')
            b.barrier(vm=[self.h_last], lgkm=[])
            self.flag_store(b, s(sT1))
            return b
        def poll2():
            b = S()
            b.e(f'''
            s_lshr_b32 {s(sT3)}, {s(sTT)}, 1
            s_lshl_b32 {s(sT3)}, {s(sT3)}, 7
            s_add_u32 {s(sT3)}, {s(sT3)}, {F2}
            ''')
            self.poll_issue(b, 'grp', vPV, s(sT3))
            return b
        def chk2():
            b = S()
            self.poll_check(b, 'grp', vPV, s(sT3), 16)
            b.e(f'''
            s_mul_i32 {s(sO0)}, {s(sTT)}, {2 * 98304}
            s_mul_i32 {s(sT0)}, {s(sW)}, {12 * 2048}
            s_add_u32 {s(sO0)}, {s(sO0)}, {s(sT0)}
            s_add_u32 {s(sO0)}, {s(sO0)}, {HF}
            ''')
            b.barrier(lgkm=[])
            return b
        V2 = KD
        CACC = V2; FR = V2 + 32; RAW = FR + 128
        assert RAW + 12 <= 256, RAW
        ACC2 = V2
        hlist = [a(240 + 4 * i, 4) for i in range(4)]
        hlist += [v(r, 4) for r in range(FR + 8, FR + 64, 4)]
        NH_EARLY = len(hlist)
        hlist += [v(r, 4) for r in range(FR + 64 + 16, 256, 4)]
        pool = len(hlist)
        hreg = lambda i: hlist[i % pool]
        hl = self.h_loads(hreg)
        if S_:
            for i in range(4):
                st.e(f'ds_write_b128 {v(c["u_wr"])}, {v(UR + 4 * i, 4)} offset:{256 * i}')
            st.barrier()
            fills = [[] for _ in range(8)]
            per = [8, 8, 7, 7, 7, 7, 0, 0]
            for rho in range(8):
                fills[rho] = w2l[:per[rho]]; w2l = w2l[per[rho]:]
            assert not w2l
            fills[2] = fills[2] + [sig2()]
            fills[5] = fills[5] + [poll2()]
            fills[6] = [S(), S(), chk2()] + hl[:3]
            fills[7] = hl[3:12]
            hl = hl[12:]
            nissued = 12
            st += self.conv(CACC, FR, RAW, B2T, fills)
            self.stamp(st, 'conv')
            st += self.conv_epi(CACC, FR + 64)
        else:
            for g in w2l[:16]: st += g
            st += sig2()
            for g in w2l[16:]: st += g
            st += poll2()
            st += chk2()
            for g in hl[:12]: st += g
            hl = hl[12:]
            nissued = 12
        self.stamp(st, 'h2')
        fills = {}
        def add(m, g): fills.setdefault(m, []).append(g)
        m = 1
        for k, g in enumerate(hl):
            idx = nissued + k
            lo = 5 * (idx - pool) + 5 if idx >= pool else 0
            m = max(m, lo)
            assert m < 5 * idx - 40, (m, idx)
            add(m, g); m += 4
        XF = FR + 64
        g = S()
        g.e(f'''
        s_lshl_b32 {s(sO2)}, {s(sTT)}, 2
        s_add_u32 {s(sO2)}, {s(sO2)}, {s(sW)}
        s_mul_i32 {s(sO2)}, {s(sO2)}, {16 * 1280}
        s_mul_i32 {s(sT0)}, {s(sCGP)}, 160
        s_add_u32 {s(sO2)}, {s(sO2)}, {s(sT0)}
        ''')
        add(m, g)
        for i in range(3):
            g = S()
            g.e(f's_add_u32 {s(sT0)}, {s(sO2)}, {6 * 1280 * i}')
            g.e(f'buffer_load_dwordx4 {v(XF + 4 * i, 4)}, {v(c["fin_g"])}, {s(RX, 4)}, {s(sT0)} offen')
            add(m + 1 + 4 * i, g)
        if S_:
            g = S()
            g.e(f'''
            s_lshl_b32 {s(sT1)}, {s(sXCD)}, 7
            s_lshl_b32 {s(sT2)}, {s(sJ)}, 2
            s_add_u32 {s(sT1)}, {s(sT1)}, {s(sT2)}
            s_add_u32 {s(sT1)}, {s(sT1)}, {F3}
            ''')
            g.barrier(vm=[self.y_last], lgkm=[])
            self.flag_store(g, s(sT1))
            add(70, g)
        g = S()
        g.e(f's_lshl_b32 {s(sT3)}, {s(sCGP)}, 7\ns_add_u32 {s(sT3)}, {s(sT3)}, {F3}')
        self.poll_issue(g, 'grp', vPV, s(sT3))
        add(190, g)
        body, tail = self.gemm2(ACC2, hreg, fills)
        st += body
        self.stamp(st, 'gemm2')
        self.poll_check(st, 'grp', vPV, s(sT3), 20)
        st.e(f'''
        s_mul_i32 {s(sT0)}, {s(sCGP)}, 10
        s_add_u32 {s(sT0)}, {s(sT0)}, {s(sW)}
        s_lshl_b32 {s(sT0)}, {s(sT0)}, 15
        s_lshl_b32 {s(sT1)}, {s(sTT)}, 7
        s_add_u32 {s(sT0)}, {s(sT0)}, {s(sT1)}
        s_add_u32 {s(sT0)}, {s(sT0)}, {YT}
        s_lshl_b32 {s(sT1)}, {s(sW)}, 10
        ''')
        st.barrier(lgkm=[])
        def ydma(b, i):
            b.e(f's_add_u32 m0, {s(sT1)}, {LYL + 4096 * i}')
            if i: b.e(f's_add_u32 {s(sT0)}, {s(sT0)}, {4 * 32768}')
            return b.e(f'buffer_load_dwordx4 {v(c["y_dma"])}, {s(RWS, 4)}, {s(sT0)} offen sc1 lds')
        ydma(st, 0); ydma(st, 1)
        A = S(); ydma(A, 2)
        st.e(f's_cmp_ge_u32 {s(sW)}, 2')
        st.append(Alt('s_cbranch_scc1', A, S()))
        st += tail
        FW = FR + 80 - 64 if False else ACC2 + 0
        st.barrier(vm=['all'])
        self.stamp(st, 'h3')
        YT_ = RAW
        for dt in range(5):
            st.e(f'ds_read_b64_tr_b16 {v(YT_ + 2 * dt, 2)}, {v(c["y_rd"])} offset:{16 * 128 * dt}')
        for dt in range(5):
            st.e(f'ds_write_b64 {v(c["yb_wr"])}, {v(YT_ + 2 * dt, 2)} offset:{32 * dt}')
        FW = XF + 12
        if FW + 112 > 256: FW = V2 - 16 if False else None
        assert FW is not None or True
        FWb = self.pick_final(V2, XF)
        st.e(f'v_add_u32 {v(FWb + 108)}, {2 * PW}, {v(c["fin_part"])}')
        st += self.final(XF, FWb)
        self.stamp(st, 'final')
        if PROFILE:
            st.e('s_waitcnt vmcnt(0)')
            self.stamp(st, 'drain')
            st.e(f's_memrealtime {s(12, 2)}')
            st.e(f's_lshl_b32 {s(sO0)}, s2, 2\ns_add_u32 {s(sO0)}, {s(sO0)}, {s(sW)}\ns_lshl_b32 {s(sO0)}, {s(sO0)}, 7\ns_add_u32 {s(sO0)}, {s(sO0)}, {PROF}')
            st.e('s_waitcnt lgkmcnt(0)')
            st.e(f'v_mov_b32 v20, 0')
            regs = [STAMP_REGS[i] for i in range(self.nstamp)]
            for i, r in enumerate([84, 86, 12] + regs):
                st.e(f'v_mov_b32 v21, {s(r)}')
                st.e(f'buffer_store_dword v21, v20, {s(RWS, 4)}, {s(sO0)} offen offset:{4 * i}')
        return st

    def pick_final(self, V2, XF):
        if XF + 12 + 112 <= 256: return XF + 12
        lo = vC0 + NCOMMON
        lo = (lo + 3) // 4 * 4
        assert lo + 112 <= XF
        return lo


def prologue():
    st = S()
    st.e('s_cmp_ge_u32 s2, 256')
    st.e('s_cbranch_scc1 L_end')
    st.e(f's_load_dwordx16 {s(16, 16)}, s[0:1], 0')
    st.e(f's_load_dwordx16 {s(32, 16)}, s[0:1], 64')
    st.e(f's_load_dwordx2 {s(48, 2)}, s[0:1], 128')
    st.e(f's_getpc_b64 {s(sPC, 2)}')
    st.raw('L_pc:')
    st.e(f'''
    v_lshrrev_b32 v6, 6, v0
    v_and_b32 {v(vL)}, 63, v0
    v_readfirstlane_b32 {s(sW)}, v6
    s_and_b32 {s(sXCD)}, s2, 7
    s_lshr_b32 {s(sJ)}, s2, 3
    s_and_b32 {s(sT0)}, {s(sJ)}, 15
    s_lshl_b32 {s(sT0)}, {s(sT0)}, 12
    v_lshl_add_u32 v6, v0, 4, {s(sT0)}
    v_min_u32 v6, L_table-L_pc, v6
    global_load_dwordx4 v[8:11], v6, {s(sPC, 2)}
    s_add_u32 {s(sPC)}, {s(sPC)}, L_table-L_pc
    s_addc_u32 {s(sPC + 1)}, {s(sPC + 1)}, 0
    v_lshlrev_b32 {v(vL16)}, 4, {v(vL)}
    v_mov_b32 {v(vONE)}, 1
    v_mov_b32 v6, 0x7ffffff0
    v_cmp_eq_u32 vcc, 0, v0
    v_lshlrev_b32 {v(vPOLL)}, 2, v0
    v_cndmask_b32 {v(vFLAG)}, v6, v0, vcc
    v_cmp_gt_u32 vcc, 48, v0
    s_lshl_b32 {s(sTB)}, {s(sXCD)}, 5
    s_add_u32 {s(sTB)}, {s(sTB)}, {s(sJ)}
    v_cndmask_b32 {v(vPOLL48)}, v6, {v(vPOLL)}, vcc
    v_cmp_gt_u32 vcc, 20, v0
    v_cndmask_b32 {v(vPOLL)}, v6, {v(vPOLL)}, vcc
    s_and_b32 {s(sT0)}, {s(sJ)}, 3
    s_and_b32 {s(sT1)}, {s(sXCD)}, 3
    s_lshl_b32 {s(sT1)}, {s(sT1)}, 2
    s_add_u32 {s(sTG)}, {s(sT1)}, {s(sT0)}
    s_lshl_b32 {s(sT1)}, {s(sXCD)}, 2
    s_add_u32 {s(sTT)}, {s(sT1)}, {s(sT0)}
    s_lshr_b32 {s(sCGP)}, {s(sJ)}, 2
    s_lshr_b32 {s(sT1)}, {s(sXCD)}, 2
    s_lshl_b32 {s(sT1)}, {s(sT1)}, 3
    s_add_u32 {s(sFG)}, {s(sT1)}, {s(sCGP)}
    s_mul_i32 {s(sCG)}, {s(sXCD)}, 20
    s_add_u32 {s(sCG)}, {s(sCG)}, {s(sJ)}
    ''')
    return st


def generate():
    Alt.cnt = 0
    lines = []
    info = {}
    for role in ('S', 'G'):
        g = Gen(role)
        pro = prologue()
        n0 = len(pro)
        if role == 'S':
            pro.e(f's_cmp_ge_u32 {s(sJ)}, 20')
            pro.e('s_cbranch_scc1 L_G')
        else:
            pro.raw('L_G:')
            pro.e(f's_mul_i32 {s(sCG)}, {s(sXCD)}, 12\ns_add_u32 {s(sCG)}, {s(sCG)}, {s(sJ)}\ns_sub_u32 {s(sCG)}, {s(sCG)}, 20')
        if PROFILE:
            x = S()
        body = g.build()
        allb = S(pro + body)
        allb.e('s_endpgm')
        out = finalize(allb)
        if role == 'G':
            k = out.index('L_G:')
            out = ['.p2align 6'] + out[k:]
        lines += out
        info[role] = g.stamp_names
    lines.append('L_end:')
    lines.append('    s_endpgm')
    tab = ['.p2align 8', '.type L_table,@object', 'L_table:']
    for g in range(len(CNAMES) // 4):
        for l in range(64):
            tab.append('    .long ' + ', '.join('0x%x' % CONST[CNAMES[4 * g + i]][l] for i in range(4)))
    tab.append('L_table_end:')
    tab.append('.size L_table, L_table_end-L_table')
    ref = open('parallel_sum__ssm_conv_s4__mixer_channel_mlp__prompt.s.ref').read()
    head = ref[:ref.index('; @launch')]
    pre = ''
    if PROFILE:
        pre = '    s_memtime s[84:85]\n    s_memrealtime s[86:87]\n'
    txt = head + f'''; @launch grid=(256,1,1) block=(256,1,1) lds={LDS_BYTES}
.amdgcn_target "amdgcn-amd-amdhsa--gfx950"
.text
.globl {KN}
.p2align 8
.type {KN},@function
{KN}:
''' + pre + '\n'.join(lines) + '\n' + '\n'.join(tab) + f'''
.section .rodata,"a"
.p2align 6
.amdhsa_kernel {KN}
  .amdhsa_next_free_vgpr 512
  .amdhsa_next_free_sgpr 102
  .amdhsa_accum_offset 256
  .amdhsa_group_segment_fixed_size 0
  .amdhsa_kernarg_size 136
  .amdhsa_user_sgpr_count 2
  .amdhsa_user_sgpr_kernarg_segment_ptr 1
  .amdhsa_system_sgpr_workgroup_id_x 1
.end_amdhsa_kernel
'''
    return txt, info


if __name__ == '__main__':
    out = sys.argv[1]
    PROFILE = 'prof' in sys.argv[2:]
    DUMPK = 'dumpk' in sys.argv[2:]
    txt, info = generate()
    open(out, 'w').write(txt)
    if PROFILE:
        import json
        json.dump(info, open(out + '.json', 'w'))
```
